```python
import torch

def _softmax(x, axis=-1):
    return torch.softmax(x, dim=axis)
def _gelu(x):
    return torch.nn.functional.gelu(x, approximate="tanh")
def _silu(x):
    return torch.nn.functional.silu(x)
def _sigmoid(x):
    return torch.sigmoid(x)
def _layernorm(x, axis=-1, eps=1e-5):
    m = x.mean(dim=axis, keepdim=True)
    v = x.var(dim=axis, keepdim=True, unbiased=False)
    return (x - m) / torch.sqrt(v + eps)
def _scatter_add(tgt, idx, src, axis=0):
    return tgt.clone().index_add_(axis, idx, src)
def _segment_sum(src, seg, n):
    out = torch.zeros((n,) + src.shape[1:], dtype=src.dtype)
    return out.index_add_(0, seg, src)
def _pad(x, pw):
    flat = tuple(v for pair in reversed(pw) for v in pair)
    return torch.nn.functional.pad(x, flat)

kernel_name = 'parallel_sum__softmax_full_mha__moe_arch_mod__prompt'

def setup_inputs():

    _w = (lambda a: (lambda t: t.to(torch.bfloat16) if t.is_floating_point() else t)(torch.as_tensor(a)))
    def _A_setup():
        B, S, D = 1, 2048, 640
        return {
            "x": _w((lambda *s: torch.randn(*s, dtype=torch.bfloat16) * 0.05)(B, S, D)),
            "wqkv": _w((lambda *s: torch.randn(*s, dtype=torch.bfloat16) * 0.1)(D, 3 * D)),
            "wo": _w((lambda *s: torch.randn(*s, dtype=torch.bfloat16) * 0.05)(D, D)),
        }
    _A_in = _A_setup()

    def _B_setup():
        B, S, D, F, C = 1, 2048, 640, 1536, 2
        return {
            "x": _w((lambda *s: torch.randn(*s, dtype=torch.bfloat16) * 0.05)(B, S, D)),
            "w_r": _w((lambda *s: torch.randn(*s, dtype=torch.bfloat16) * 3.2)(D)),
            "w_gate": _w((lambda *s: torch.randn(*s, dtype=torch.bfloat16) * 0.1)(D, F)),
            "w_up": _w((lambda *s: torch.randn(*s, dtype=torch.bfloat16) * 0.1)(D, F)),
            "w_down": _w((lambda *s: torch.randn(*s, dtype=torch.bfloat16) * 0.1)(F, D)),
        }
    _B_in = _B_setup()

    return {
        "A_x": _A_in["x"],
        "A_wqkv": _A_in["wqkv"],
        "A_wo": _A_in["wo"],
        "B_x": _B_in["x"],
        "B_w_r": _B_in["w_r"],
        "B_w_gate": _B_in["w_gate"],
        "B_w_up": _B_in["w_up"],
        "B_w_down": _B_in["w_down"],
    }

def reference(A_x, A_wqkv, A_wo, B_x, B_w_r, B_w_gate, B_w_up, B_w_down):
    def _A_ref(x, wqkv, wo):
        B, S, D = x.shape
        H = 32; Dh = D // H
        qkv = (lambda x, *d: x.permute(*d))((x @ wqkv).reshape(B, S, 3, H, Dh), 2, 0, 3, 1, 4)
        q, k, v = qkv[0], qkv[1], qkv[2]
        scale = Dh ** -0.5
        scores = torch.einsum("bhqd,bhkd->bhqk", q, k) * scale
        p = _softmax(scores, axis=-1)
        o = torch.einsum("bhqk,bhkd->bhqd", p, v)
        return (lambda x, *d: x.permute(*d))(o, 0, 2, 1, 3).reshape(B, S, D) @ wo

    def _B_ref(x, w_r, w_gate, w_up, w_down):
        B, S, D = x.shape
        C = 2
        r = x @ w_r
        idx = torch.argsort(-r, axis=-1)[:, :C]
        idx_e = (lambda x, n, axis: torch.repeat_interleave(x, n, dim=axis))(idx.reshape(B, C, 1), D, axis=2)
        x_sel = (lambda x, i, axis: torch.take_along_dim(x, i, dim=axis))(x, idx_e, axis=1)
        g = _silu(x_sel @ w_gate)
        u = x_sel @ w_up
        y = (g * u) @ w_down
        r_sel = _sigmoid((lambda x, i, axis: torch.take_along_dim(x, i, dim=axis))(r, idx, axis=1))
        y = y * r_sel.reshape(B, C, 1)
        b_off = (torch.arange(B) * S).reshape(B, 1)
        flat_idx = (idx + b_off).reshape(B * C)
        zero = (x * 0.0).reshape(B * S, D)
        upd = _scatter_add(zero, flat_idx, y.reshape(B * C, D), axis=0)
        return x + upd.reshape(B, S, D)

    x = A_x
    xn = _layernorm(x, axis=-1)
    return x + _A_ref(xn, A_wqkv, A_wo) + _B_ref(xn, B_w_r, B_w_gate, B_w_up, B_w_down)
```

```python
import os, sys, struct, subprocess, ctypes
import numpy as np
sys.path.insert(0, "cdna_kernels")
import cdna_launch as cl

TEMPLATE = """
; @launch grid=({grid},1,1) block=({block},1,1) lds={lds}
.amdgcn_target "amdgcn-amd-amdhsa--gfx950"
.text
.globl mb_kernel
.p2align 8
.type mb_kernel,@function
mb_kernel:
    s_load_dwordx2 s[4:5], s[0:1], 0
    s_load_dwordx2 s[6:7], s[0:1], 8
    s_waitcnt lgkmcnt(0)
    s_mov_b32 s8, s4
    s_mov_b32 s9, s5
    s_mov_b32 s10, 0x10000000
    s_mov_b32 s11, 0x00020000
    s_mov_b32 s12, s6
    s_mov_b32 s13, s7
    s_mov_b32 s14, 0x100000
    s_mov_b32 s15, 0x00020000
    v_mov_b32 v255, v0
{pre}
    s_barrier
    s_mov_b32 s20, {iters}
    s_memtime s[16:17]
    s_waitcnt lgkmcnt(0)
.p2align 6
L_loop:
{body}
    s_sub_u32 s20, s20, 1
    s_cmp_lg_u32 s20, 0
    s_cbranch_scc1 L_loop
    s_nop 15
    s_nop 15
    s_waitcnt vmcnt(0) lgkmcnt(0)
    s_memtime s[18:19]
    s_waitcnt lgkmcnt(0)
    s_sub_u32 s18, s18, s16
    v_lshrrev_b32 v254, 6, v255
    s_lshl_b32 s21, s2, 4
    v_add_u32 v254, s21, v254
    v_lshlrev_b32 v254, 2, v254
    v_mov_b32 v253, s18
    buffer_store_dword v253, v254, s[12:15], 0 offen
    s_waitcnt vmcnt(0)
    s_endpgm
.section .rodata,"a"
.p2align 6
.amdhsa_kernel mb_kernel
  .amdhsa_next_free_vgpr {nvgpr}
  .amdhsa_next_free_sgpr 102
  .amdhsa_accum_offset {accum}
  .amdhsa_group_segment_fixed_size 0
  .amdhsa_kernarg_size 16
  .amdhsa_user_sgpr_count 2
  .amdhsa_user_sgpr_kernarg_segment_ptr 1
  .amdhsa_system_sgpr_workgroup_id_x 1
.end_amdhsa_kernel
"""

_inbuf = None
_outbuf = None
def run(name, body, pre="", iters=200, waves_per_simd=1, grid=256, lds=0, nvgpr=256, accum=256, quiet=False, unroll=16):
    global _inbuf, _outbuf
    block = 256 * waves_per_simd
    body = '\n'.join([body] * unroll)
    src = TEMPLATE.format(grid=grid, block=block, lds=lds, pre=pre, body=body, iters=iters, nvgpr=nvgpr, accum=accum)
    if accum < 256:
        src = src.replace("v255", "v%d" % (accum - 1)).replace("v254", "v%d" % (accum - 2)).replace("v253", "v%d" % (accum - 3))
    src = cl.with_harness_metadata(src, "mb_kernel", 2)
    os.makedirs("mb", exist_ok=True)
    open("k.s", "w").write(src)
    r = subprocess.run([cl.ROCM_CLANG, "-x", "assembler", "-target", "amdgcn-amd-amdhsa", "-mcpu=gfx950", "k.s", "-o", "k.co"], capture_output=True, text=True)
    if r.returncode != 0:
        print(name, "ASM FAIL", r.stderr[:2000])
        return None
    if not os.path.exists('/dev/kfd'):
        print(name, "assembled ok")
        return None
    if _inbuf is None:
        rng = np.random.default_rng(0)
        _inbuf = cl.DeviceBuffer.from_numpy((rng.standard_normal(1 << 26).astype(np.float32)))
        _outbuf = cl.DeviceBuffer(0x100000)
    k = cl.AsmKernel("k.co", "mb_kernel")
    ka = cl.pack_ptr_kernargs([_inbuf.ptr, _outbuf.ptr])
    res = []
    for rep in range(3):
        k.launch((grid, 1, 1), (block, 1, 1), ka, lds)
        cl.hip_check(cl._hip.hipDeviceSynchronize())
        out = _outbuf.to_numpy(np.uint32, (grid, 16))[:, : 4 * waves_per_simd]
        res.append(out.astype(np.float64))
    k.unload()
    o = res[-1]
    per = o / (iters * unroll)
    if not quiet:
        print(f"{name:60s} w/simd={waves_per_simd} cyc/iter mean={per.mean():9.2f} min={per.min():9.2f} max={per.max():9.2f}  thru(max/w)={per.max(axis=1).mean()/waves_per_simd:8.2f}")
    return per.mean()
```

```python
from mbl import run
def pre(kind, cbk):
    p = "v_and_b32 v1, 63, v0\nv_lshrrev_b32 v2, 6, v0\ns_mov_b32 s40, 0x1999999a\n"
    if kind == "lin":
        p += "v_mul_hi_u32 v3, v1, s40\nv_mul_u32_u24 v4, 10, v3\nv_sub_u32 v4, v1, v4\nv_mul_u32_u24 v3, 1280, v3\nv_lshl_add_u32 v3, v4, 4, v3\n"
    else:
        p += "s_mov_b32 s40, 0xccccccd\nv_mul_hi_u32 v3, v1, s40\nv_mul_u32_u24 v4, 20, v3\nv_sub_u32 v4, v1, v4\n"
        full0 = 32 if cbk % 2 else 0; half0 = 0 if cbk % 2 else 128
        p += f"v_lshrrev_b32 v5, 3, v4\nv_and_b32 v6, 7, v4\nv_lshlrev_b32 v6, 4, v6\nv_add_u32 v6, {full0}, v6\n"
        p += f"v_subrev_u32 v7, 16, v4\nv_lshrrev_b32 v8, 1, v7\nv_and_b32 v7, 1, v7\nv_lshlrev_b32 v7, 4, v7\nv_add_u32 v7, {half0}, v7\n"
        p += "v_cmp_gt_u32 vcc, 16, v4\ns_nop 1\nv_cndmask_b32 v5, v8, v5, vcc\nv_cndmask_b32 v6, v7, v6, vcc\n"
        p += "v_lshl_add_u32 v3, v3, 1, v5\nv_mul_u32_u24 v3, 1280, v3\nv_add_u32 v3, v3, v6\n"
    p += f"v_add_u32 v3, {160*cbk}, v3\nv_mul_u32_u24 v4, 7680, v2\nv_add_u32 v3, v3, v4\nv_readfirstlane_b32 s33, v2\ns_lshl_b32 s33, s33, 12\ns_mov_b32 m0, s33\ns_mov_b32 exec_hi, 0xfffffff\n"
    return p
body = ""
for i in range(27):
    body += f"s_mov_b32 s30, {i*24*1280}\nbuffer_load_dwordx4 v3, s[8:11], s30 offen lds\ns_waitcnt vmcnt(3)\n"
for kind in ("lin", "quad"):
    for cbk in (0, 1, 2, 3):
        r = run(f"{kind} cbk={cbk}", body, pre=pre(kind, cbk), waves_per_simd=1, nvgpr=128, accum=128, unroll=1, iters=20, lds=65536, quiet=True)
        if r: print(kind, cbk, f"cycles per 108 instr: {r:.0f}  per instr {r/108:.1f}")
```

```python
import os, sys, struct, subprocess, ctypes
import numpy as np
sys.path.insert(0, "cdna_kernels")
import cdna_launch as cl

TEMPLATE = """
; @launch grid=({grid},1,1) block=({block},1,1) lds={lds}
.amdgcn_target "amdgcn-amd-amdhsa--gfx950"
.text
.globl mb_kernel
.p2align 8
.type mb_kernel,@function
mb_kernel:
    s_load_dwordx2 s[4:5], s[0:1], 0
    s_load_dwordx2 s[6:7], s[0:1], 8
    s_waitcnt lgkmcnt(0)
    s_mov_b32 s8, s4
    s_mov_b32 s9, s5
    s_mov_b32 s10, 0x10000000
    s_mov_b32 s11, 0x00020000
    s_mov_b32 s12, s6
    s_mov_b32 s13, s7
    s_mov_b32 s14, 0x100000
    s_mov_b32 s15, 0x00020000
    v_mov_b32 v255, v0
{pre}
    s_barrier
    s_mov_b32 s20, {iters}
    s_memtime s[16:17]
    s_memrealtime s[22:23]
    s_waitcnt lgkmcnt(0)
.p2align 6
L_loop:
{body}
    s_sub_u32 s20, s20, 1
    s_cmp_lg_u32 s20, 0
    s_cbranch_scc1 L_loop
    s_nop 15
    s_nop 15
    s_waitcnt vmcnt(0) lgkmcnt(0)
    s_memtime s[18:19]
    s_memrealtime s[24:25]
    s_waitcnt lgkmcnt(0)
    s_sub_u32 s18, s18, s16
    s_sub_u32 s24, s24, s22
    v_lshrrev_b32 v254, 6, v255
    s_lshl_b32 s21, s2, 4
    v_add_u32 v254, s21, v254
    v_lshlrev_b32 v254, 2, v254
    v_mov_b32 v253, s18
    buffer_store_dword v253, v254, s[12:15], 0 offen
    v_mov_b32 v253, s24
    s_mov_b32 s21, 0x10000
    s_nop 1
    buffer_store_dword v253, v254, s[12:15], s21 offen
    s_waitcnt vmcnt(0)
    s_endpgm
.section .rodata,"a"
.p2align 6
.amdhsa_kernel mb_kernel
  .amdhsa_next_free_vgpr {nvgpr}
  .amdhsa_next_free_sgpr 102
  .amdhsa_accum_offset {accum}
  .amdhsa_group_segment_fixed_size 0
  .amdhsa_kernarg_size 16
  .amdhsa_user_sgpr_count 2
  .amdhsa_user_sgpr_kernarg_segment_ptr 1
  .amdhsa_system_sgpr_workgroup_id_x 1
.end_amdhsa_kernel
"""

_inbuf = None
_outbuf = None
def run(name, body, pre="", iters=200, waves_per_simd=1, grid=256, lds=0, nvgpr=256, accum=256, quiet=False, unroll=16):
    global _inbuf, _outbuf
    block = 256 * waves_per_simd
    body = '\n'.join([body] * unroll)
    src = TEMPLATE.format(grid=grid, block=block, lds=lds, pre=pre, body=body, iters=iters, nvgpr=nvgpr, accum=accum)
    if accum < 256:
        src = src.replace("v255", "v%d" % (accum - 1)).replace("v254", "v%d" % (accum - 2)).replace("v253", "v%d" % (accum - 3))
    src = cl.with_harness_metadata(src, "mb_kernel", 2)
    os.makedirs("mb", exist_ok=True)
    open("k.s", "w").write(src)
    r = subprocess.run([cl.ROCM_CLANG, "-x", "assembler", "-target", "amdgcn-amd-amdhsa", "-mcpu=gfx950", "k.s", "-o", "k.co"], capture_output=True, text=True)
    if r.returncode != 0:
        print(name, "ASM FAIL", r.stderr[:2000])
        return None
    if not os.path.exists('/dev/kfd'):
        print(name, "assembled ok")
        return None
    if _inbuf is None:
        rng = np.random.default_rng(0)
        a = (rng.standard_normal(1 << 22) * 2.5).astype(np.float32).view(np.uint32)
        _inbuf = cl.DeviceBuffer.from_numpy(np.tile(((a + 0x8000) >> 16).astype(np.uint16), 32))
        _outbuf = cl.DeviceBuffer(0x100000)
    k = cl.AsmKernel("k.co", "mb_kernel")
    ka = cl.pack_ptr_kernargs([_inbuf.ptr, _outbuf.ptr])
    res = []
    import time
    clks = []
    for rep in range(6):
        time.sleep(0.002)
        k.launch((grid, 1, 1), (block, 1, 1), ka, lds)
        cl.hip_check(cl._hip.hipDeviceSynchronize())
        oo = _outbuf.to_numpy(np.uint32, (2048, 16))
        out = oo[:grid, : 4 * waves_per_simd]; rt = oo[1024:1024 + grid, : 4 * waves_per_simd]
        clks.append((out.sum() / rt.sum() * 100, rt.max() / 100))
        clk = np.median([c[0] for c in clks[1:] or clks]); us = np.median([c[1] for c in clks[1:] or clks])
        res.append(out.astype(np.float64))
    k.unload()
    o = res[-1]
    per = o / (iters * unroll)
    if not quiet:
        print(f"{name:60s} w/simd={waves_per_simd} cyc/iter mean={per.mean():9.2f} min={per.min():9.2f} max={per.max():9.2f}  thru(max/w)={per.max(axis=1).mean()/waves_per_simd:8.2f} clk={clk:.0f} us={us:.2f}")
    return per.mean()
```

```python
from mbl2 import run
pre = "v_and_b32 v1, 63, v0\nv_lshlrev_b32 v2, 4, v1\n" + "\n".join(f"s_mov_b32 s40, {i*4096}\nbuffer_load_dword v{i}, v2, s[8:11], s40 offen" for i in range(64, 160)) + "\ns_waitcnt vmcnt(0)\n" + "\n".join(f"v_subrev_u32 v{i}, 0x01800180, v{i}" for i in range(64, 160)) + "\n" + "\n".join(f"v_mov_b32 v{i}, 0" for i in range(8, 64)) + "\n"
b32 = ""
for u in range(4):
    for c in range(2):
        b32 += f"v_mfma_f32_32x32x16_bf16 v[{8+16*c}:{23+16*c}], v[{64+32*0+16*c+4*u}:{67+16*c+4*u}], v[{128+4*u}:{131+4*u}], v[{8+16*c}:{23+16*c}]\n"
b16 = ""
for k in range(2):
    for n in range(4):
        for t in range(2):
            d = 8 + 4 * (2 * n + t)
            b16 += f"v_mfma_f32_16x16x32_bf16 v[{d}:{d+3}], v[{64+16*k+4*n}:{67+16*k+4*n}], v[{128+8*k+4*t}:{131+8*k+4*t}], v[{d}:{d+3}]\n"
for rep in range(2):
    for w in (1,):
        run("32x32x16 x8", b32, pre=pre, waves_per_simd=w, unroll=4, iters=10)
        run("16x16x32 x16", b16, pre=pre, waves_per_simd=w, unroll=4, iters=10)
```
